```python
import torch

def _softmax(x, axis=-1):
    return torch.softmax(x, dim=axis)

def _gelu(x):
    return torch.nn.functional.gelu(x, approximate='tanh')

def _silu(x):
    return torch.nn.functional.silu(x)

def _sigmoid(x):
    return torch.sigmoid(x)

def _layernorm(x, axis=-1, eps=1e-05):
    m = x.mean(dim=axis, keepdim=True)
    v = x.var(dim=axis, keepdim=True, unbiased=False)
    return (x - m) / torch.sqrt(v + eps)

def _scatter_add(tgt, idx, src, axis=0):
    return tgt.clone().index_add_(axis, idx, src)

def _segment_sum(src, seg, n):
    out = torch.zeros((n,) + src.shape[1:], dtype=src.dtype)
    return out.index_add_(0, seg, src)

def _pad(x, pw):
    flat = tuple((v for pair in reversed(pw) for v in pair))
    return torch.nn.functional.pad(x, flat)
kernel_name = 'standalone__swin_window_attn__vision'

def setup_inputs():

    _w = lambda a: (lambda t: t.to(torch.bfloat16) if t.is_floating_point() else t)(torch.as_tensor(a))
    H = W = 384 // 7 * 7
    C, win = (96, 7)
    return {'x': _w((lambda *s: torch.randn(*s, dtype=torch.bfloat16) * 0.4)(1, H, W, C)), 'wqkv': _w((lambda *s: torch.randn(*s, dtype=torch.bfloat16) * 0.4)(C, 3 * C)), 'wo': _w((lambda *s: torch.randn(*s, dtype=torch.bfloat16) * 0.05)(C, C))}

def reference(x, wqkv, wo):
    B, H, W, C = x.shape
    win = 7
    nh, nw = (H // win, W // win)
    xw = (lambda x, *d: x.permute(*d))(x.reshape(B, nh, win, nw, win, C), 0, 1, 3, 2, 4, 5)
    xw = xw.reshape(B * nh * nw, win * win, C)
    qkv = xw @ wqkv
    q, k, v = (qkv[..., :C].clone(), qkv[..., C:2 * C].clone(), qkv[..., 2 * C:].clone())
    scale = C ** (-0.5)
    p = _softmax(torch.einsum('bqc,bkc->bqk', q, k) * scale, axis=-1)
    o = torch.einsum('bqk,bkc->bqc', p, v) @ wo
    o = (lambda x, *d: x.permute(*d))(o.reshape(B, nh, nw, win, win, C), 0, 1, 3, 2, 4, 5)
    return o.reshape(B, H, W, C)
```

```python
import re

TRANS = ("v_exp_f32", "v_log_f32", "v_rcp_f32", "v_rsq_f32", "v_sqrt_f32", "v_sin_f32", "v_cos_f32")

def regs_of(tok):
    tok = tok.strip()
    neg = tok.lstrip("-")
    m = re.fullmatch(r"abs\((.*)\)|\|(.*)\|", neg)
    if m: neg = m.group(1) or m.group(2)
    m = re.fullmatch(r"([vas])(\d+)", neg)
    if m: return [(m.group(1), int(m.group(2)))]
    m = re.fullmatch(r"([vas])\[(\d+):(\d+)\]", neg)
    if m: return [(m.group(1), i) for i in range(int(m.group(2)), int(m.group(3)) + 1)]
    if neg == "vcc": return [("s", "vcc")]
    if neg == "exec": return [("s", "exec")]
    if neg == "m0": return [("s", "m0")]
    return []

class Ins:
    def __init__(self, text):
        self.text = text
        body = text.split(";")[0].strip()
        parts = body.split(None, 1)
        self.op = parts[0]
        rest = parts[1] if len(parts) > 1 else ""
        ops = [o.strip() for o in rest.split(",")] if rest else []
        mods = ""
        if ops:
            sp = ops[-1].split(None, 1)
        ops = []
        cur = ""; depth = 0
        for ch in rest:
            if ch == "[": depth += 1
            if ch == "]": depth -= 1
            if ch == "," and depth == 0:
                ops.append(cur.strip()); cur = ""
            else: cur += ch
        if cur.strip(): ops.append(cur.strip())
        if ops:
            sp = ops[-1].split(None, 1)
            ops[-1] = sp[0]
            mods = sp[1] if len(sp) > 1 else ""
        self.ops = ops; self.mods = mods
        op = self.op
        self.is_mfma = op.startswith("v_mfma")
        self.is_valu = op.startswith("v_") and not self.is_mfma
        self.is_trans = any(op.startswith(t) for t in TRANS)
        self.is_ds = op.startswith("ds_")
        self.is_vmem = op.startswith("buffer_") or op.startswith("global_")
        self.is_smem = op.startswith("s_load") or op.startswith("s_memtime") or op.startswith("s_memrealtime") or op.startswith("s_buffer_load")
        self.is_salu = op.startswith("s_") and not self.is_smem
        self.is_dma = self.is_vmem and (" lds" in " " + mods or "_lds_" in op)
        self.is_store = self.is_vmem and "store" in op
        self.is_dpp = "dpp" in op or "row_" in mods or "quad_perm" in mods
        self.is_perml = op.startswith("v_permlane")
        self.w = []; self.r = []
        R = lambda i: regs_of(ops[i]) if i < len(ops) else []
        allr = lambda a: [x for i in range(a, len(ops)) for x in R(i)]
        self.srcC = []; self.srcAB = []
        if self.is_mfma:
            self.w = R(0); self.srcAB = R(1) + R(2); self.srcC = R(3); self.r = self.srcAB + self.srcC
            self.passes = 8 if "32x32" in op else 4
        elif self.is_valu:
            if op.startswith("v_cmp"):
                self.w = R(0); self.r = allr(1)
                if op.startswith("v_cmpx"): self.w = self.w + [("s", "exec")]
            elif op.startswith("v_permlane") and "swap" in op:
                self.w = R(0) + R(1); self.r = R(0) + R(1)
            elif op.startswith(("v_add_co", "v_sub_co", "v_addc_co", "v_subb_co")):
                self.w = R(0) + R(1); self.r = allr(2)
            elif op.startswith(("v_fmac", "v_pk_fmac")) or op.startswith("v_writelane"):
                self.w = R(0); self.r = allr(0)
            elif op == "v_nop":
                pass
            else:
                self.w = R(0); self.r = allr(1)
                if self.is_dpp: self.r = self.r + R(0)
        elif self.is_ds:
            if op.startswith(("ds_read", "ds_bpermute", "ds_permute", "ds_swizzle")):
                self.w = R(0); self.r = allr(1)
            else:
                self.r = allr(0)
        elif self.is_vmem:
            if self.is_dma:
                self.r = allr(0) + [("s", "m0")]
            elif self.is_store:
                self.r = allr(0)
                self.data = R(0) if op.startswith("buffer") else R(1)
            elif "atomic" in op:
                self.r = allr(0)
                if "sc0" in mods: self.w = R(0)
            else:
                self.w = R(0); self.r = allr(1)
        elif self.is_smem:
            self.w = R(0); self.r = allr(1)
        elif self.is_salu:
            if op.startswith(("s_cmp", "s_waitcnt", "s_nop", "s_barrier", "s_branch", "s_cbranch", "s_setprio", "s_endpgm", "s_sleep", "s_bitcmp")):
                self.r = allr(0)
            else:
                self.w = R(0); self.r = allr(1)
                if "saveexec" in op: self.w = self.w + [("s", "exec")]
        self.ws = set(self.w); self.rs = set(self.r)
    def states(self):
        if self.op == "s_nop": return int(self.ops[0], 0) + 1
        return 1

def need(p, c):
    n = 0
    vw = {x for x in p.ws if x[0] in "va"}
    if p.is_mfma:
        P = p.passes
        big = {8: 12, 4: 8}[P]; ov = {8: 10, 4: 6}[P]
        if c.is_mfma:
            if vw & set(c.srcAB): n = max(n, big)
            if vw & set(c.srcC):
                if not (list(c.srcC) == list(p.w) and c.passes == P): n = max(n, ov)
        else:
            if vw & (c.rs | c.ws): n = max(n, big)
        if c.is_valu and set(p.srcC) & c.ws: n = max(n, {8: 7, 4: 3}[P])
        if (c.is_ds or c.is_vmem) and set(p.srcC) & c.ws: n = max(n, {8: 7, 4: 3}[P])
    if p.is_valu:
        if c.is_mfma and vw & c.rs: n = max(n, 2)
        if p.is_trans and c.is_valu and not c.is_trans and vw & c.rs: n = max(n, 1)
        if p.is_trans and c.is_valu and c.is_trans and vw & c.rs: n = max(n, 1)
        if c.is_perml and vw & c.rs: n = max(n, 2)
        if c.is_dpp and vw & c.rs: n = max(n, 2)
        if c.op.startswith(("v_readfirstlane", "v_readlane")) and vw & c.rs: n = max(n, 1)
        sw = {x for x in p.ws if x[0] == "s"}
        if sw:
            crs = set(c.rs)
            if c.op.startswith("v_cndmask") and len(c.ops) == 3: crs.add(("s", "vcc"))
            if c.is_valu and sw & crs: n = max(n, 4 if c.op.startswith(("v_readlane", "v_writelane")) else 2)
            if c.is_vmem and sw & crs: n = max(n, 5)
            if c.is_salu and sw & crs: n = max(n, 2)
            if c.is_smem and sw & crs: n = max(n, 5)
            if ("s", "exec") in sw:
                if c.is_mfma or c.is_perml or c.op.startswith(("v_readlane", "v_readfirstlane", "v_writelane")): n = max(n, 4)
                if c.is_dpp: n = max(n, 5)
        if "op_sel" in p.mods or "sdwa" in p.op:
            if c.is_valu and vw & (c.rs | c.ws): n = max(n, 1)
    if p.is_store and ("x4" in p.op or "x3" in p.op):
        if set(p.data) & c.ws: n = max(n, 2 if (c.is_valu or c.is_mfma) else 1)
    if p.is_salu and ("s", "m0") in p.ws and c.is_dma: n = max(n, 1)
    return n

class Asm:
    def __init__(self):
        self.out = []
        self.hist = []
        self.vm = []
        self.lg = []
        self.nops = 0
    def raw(self, s): self.out.append(s)
    def label(self, name, keep=False):
        self.out.append(name + ":")
    def comment(self, s): self.out.append("    ; " + s)
    def _emit(self, ins):
        self.out.append("    " + ins.text); self.hist.append(ins)
        if len(self.hist) > 40: self.hist.pop(0)
    def waitcnt(self, vm=None, lg=None):
        parts = []
        if vm is not None:
            vm = min(vm, 63)
            if vm < len(self.vm): parts.append(f"vmcnt({vm})"); self.vm = self.vm[len(self.vm) - vm:] if vm else []
        if lg is not None:
            lg = min(lg, 15)
            if lg < len(self.lg):
                if any(s for _, s in self.lg): lg = 0
                parts.append(f"lgkmcnt({lg})"); self.lg = self.lg[len(self.lg) - lg:] if lg else []
        if parts: self._emit(Ins("s_waitcnt " + " ".join(parts)))
    def force_wait(self, text):
        self._emit(Ins("s_waitcnt " + text))
        m = re.search(r"vmcnt\((\d+)\)", text)
        if m:
            n = int(m.group(1)); self.vm = self.vm[max(0, len(self.vm) - n):] if n else []
        m = re.search(r"lgkmcnt\((\d+)\)", text)
        if m:
            n = int(m.group(1)); self.lg = self.lg[max(0, len(self.lg) - n):] if n else []
    def wait_tag(self, tag):
        idx = [i for i, (_, t) in enumerate(self.vm) if t == tag]
        if idx: self.waitcnt(vm=len(self.vm) - 1 - max(idx))
    def __call__(self, text, tag=None):
        for line in text.strip().split("\n"):
            line = line.strip()
            if not line or line.startswith(";"): continue
            self.one(line, tag)
    def one(self, text, tag=None):
        ins = Ins(text)
        touched = ins.rs | ins.ws
        vmn = None
        for i, (d, _) in enumerate(self.vm):
            if d & touched: vmn = len(self.vm) - 1 - i
        lgn = None
        for i, (d, _) in enumerate(self.lg):
            if d & touched: lgn = len(self.lg) - 1 - i
        if vmn is not None or lgn is not None: self.waitcnt(vm=vmn, lg=lgn)
        dist = 0; req = 0
        for p in reversed(self.hist):
            n = need(p, ins)
            if n - dist > req: req = n - dist
            dist += p.states()
            if dist > 20: break
        while req > 0:
            k = min(req, 16)
            self._emit(Ins(f"s_nop {k-1}")); req -= k; self.nops += k
        self._emit(ins)
        if ins.is_vmem: self.vm.append((set(ins.w), tag))
        if ins.is_ds: self.lg.append((set(ins.w), False))
        if ins.is_smem: self.lg.append((set(ins.w), True))
    def text(self): return "\n".join(self.out) + "\n"

def vr(a, n=1):
    return f"v{a}" if n == 1 else f"v[{a}:{a+n-1}]"
```

```python
import sys, struct
from asmgen import Asm, vr

KN = "standalone__swin_window_attn__vision_kernel"
XB = 27433728
def f32bits(x): return struct.unpack("<I", struct.pack("<f", x))[0]
CS = f32bits(96 ** -0.5 * 1.4426950408889634)
HEADER = open("standalone__swin_window_attn__vision.s.ref").read().split("; Override launch")[0]
MF = "v_mfma_f32_32x32x16_bf16"

def wrap(body, grid, block, lds, nfv, nfs=48):
    return f"""{HEADER}; @launch grid=({grid},1,1) block=({block},1,1) lds={lds}
.amdgcn_target "amdgcn-amd-amdhsa--gfx950"
.text
.globl {KN}
.p2align 8
.type {KN},@function
{KN}:
{body}
.section .rodata,"a"
.p2align 6
.amdhsa_kernel {KN}
  .amdhsa_next_free_vgpr {nfv}
  .amdhsa_next_free_sgpr {nfs}
  .amdhsa_accum_offset {(nfv+3)//4*4}
  .amdhsa_group_segment_fixed_size 0
  .amdhsa_kernarg_size 48
  .amdhsa_user_sgpr_count 2
  .amdhsa_user_sgpr_kernarg_segment_ptr 1
  .amdhsa_system_sgpr_workgroup_id_x 1
.end_amdhsa_kernel
"""

def gen(store_flags="", load_flags="", stamps=False):
    a = Asm()
    SX, SW, SO, SOUT = 8, 12, 16, 20
    sWave, sBase, sT0, sT1, sT2, sT3 = 24, 25, 26, 27, 28, 29
    sHM = 30
    sC = 32
    sCol, sRow = 33, 34
    vLds, vOff0, vOff1, vT0, vT1, vT2, vNeg = 1, 2, 3, 4, 5, 6, 7
    XF = lambda tt, s: 8 + (tt * 6 + s) * 4
    WF = lambda s: 56 + 4 * s
    ACC = [80, 96]
    TF = lambda qt, s: 112 + (qt * 6 + s) * 4
    PF = lambda qt, ks: 112 + qt * 24 + ks * 4
    UF = lambda ks: [128, 132, 152, 156][ks]
    TMP = 160
    srd = lambda b: f"s[{b}:{b+3}]"
    nstamp = [0]
    def stamp():
        if not stamps: return
        i = nstamp[0]; nstamp[0] += 1
        a(f"s_memtime s[{48+2*i}:{49+2*i}]")

    a("s_cmp_ge_u32 s2, 243")
    a("s_cbranch_scc1 L_end")
    stamp()
    a("s_load_dwordx4 s[4:7], s[0:1], 0")
    a("s_load_dwordx4 s[36:39], s[0:1], 16")
    if stamps: a("s_load_dwordx2 s[40:41], s[0:1], 40")
    a(f"v_lshrrev_b32 v{vT0}, 6, v0")
    a(f"v_and_b32 v0, 63, v0")
    a(f"v_readfirstlane_b32 s{sWave}, v{vT0}")
    a(f"v_lshlrev_b32 v{vLds}, 4, v0")
    a(f"s_mul_i32 s{sT0}, s2, 12")
    a(f"s_add_u32 s{sT0}, s{sT0}, s{sWave}")
    if stamps: a(f"s_lshl_b32 s42, s{sT0}, 7")
    a(f"s_mul_i32 s{sT1}, s{sT0}, 1214")
    a(f"s_lshr_b32 s{sT1}, s{sT1}, 16")
    a(f"s_mul_i32 s{sT2}, s{sT1}, 54")
    a(f"s_sub_u32 s{sT2}, s{sT0}, s{sT2}")
    a(f"s_mul_i32 s{sBase}, s{sT1}, 508032")
    a(f"s_mul_i32 s{sT2}, s{sT2}, 1344")
    a(f"s_add_u32 s{sBase}, s{sBase}, s{sT2}")
    a(f"v_and_b32 v{vT0}, 31, v0")
    a(f"v_lshrrev_b32 v{vT1}, 5, v0")
    a(f"v_lshlrev_b32 v{vT1}, 4, v{vT1}")
    a(f"s_mov_b32 s{sT3}, {72576 - 7 * 192}")
    for tt, vo in ((0, vOff0), (1, vOff1)):
        if tt: a(f"v_add_u32 v{vT0}, 32, v{vT0}")
        a(f"v_mul_u32_u24 v{vT2}, 37, v{vT0}")
        a(f"v_lshrrev_b32 v{vT2}, 8, v{vT2}")
        a(f"v_mul_u32_u24 v{vT2}, s{sT3}, v{vT2}")
        a(f"v_mul_u32_u24 v{vo}, 192, v{vT0}")
        a(f"v_add3_u32 v{vo}, v{vo}, v{vT2}, v{vT1}")
    a(f"v_cmp_lt_u32 vcc, 48, v{vT0}")
    a(f"v_mov_b32 v{vT2}, 0x40000000")
    a(f"v_cndmask_b32 v{vOff1}, v{vOff1}, v{vT2}, vcc")
    a(f"v_mov_b32 v{vNeg}, 0xff800000")
    a(f"s_mov_b32 s{sHM}, 0")
    a(f"s_mov_b32 s{sHM+1}, -1")
    a(f"s_mov_b32 s{sC}, {CS:#x}")
    vS, vRq = vT0, vT2
    a(f"v_and_b32 v{vS}, 19, v0")
    a(f"v_and_b32 v{vT2}, 4, v0")
    a(f"v_lshl_or_b32 v{vS}, v{vT2}, 1, v{vS}")
    a(f"v_and_b32 v{vT2}, 8, v0")
    a(f"v_lshrrev_b32 v{vT2}, 1, v{vT2}")
    a(f"v_or_b32 v{vS}, v{vS}, v{vT2}")
    a(f"v_mul_u32_u24 v{vRq}, 576, v{vS}")
    a(f"v_add_u32 v{vRq}, v{vRq}, v{vT1}")
    a.waitcnt(lg=0)
    for sr, lo, nb in ((SX, 4, XB), (SW, 6, 96 * 576), (SO, 36, 96 * 192), (SOUT, 38, XB)):
        a(f"s_mov_b32 s{sr}, s{lo}")
        a(f"s_mov_b32 s{sr+1}, s{lo+1}")
        a(f"s_mov_b32 s{sr+2}, {nb}")
        a(f"s_mov_b32 s{sr+3}, 0x20000")
    def xloads():
        for tt in range(2):
            for s in range(6):
                a(f"buffer_load_dwordx4 {vr(XF(tt, s), 4)}, v{[vOff0, vOff1][tt]}, {srd(SX)}, s{sBase} offen offset:{32*s} {load_flags}")
    def cvt_tile(dst, acc, n=8):
        for i in range(n): a(f"v_cvt_pk_bf16_f32 v{dst+i}, v{acc+2*i}, v{acc+2*i+1}")

    a(f"s_cmp_ge_u32 s{sWave}, 9")
    a("s_cbranch_scc1 L_G")
    import copy
    snap = (list(a.hist), list(a.vm), list(a.lg))
    vRo, vVal = TMP, TMP + 1
    a(f"v_mul_u32_u24 v{vRo}, 192, v{vS}")
    a(f"v_add_u32 v{vRo}, v{vRo}, v{vT1}")
    a(f"s_mul_i32 s{sCol}, s{sWave}, 11")
    a(f"s_lshr_b32 s{sCol}, s{sCol}, 5")
    a(f"s_mul_i32 s{sT0}, s{sCol}, 3")
    a(f"s_sub_u32 s{sRow}, s{sWave}, s{sT0}")
    a(f"s_mul_i32 s{sT0}, s{sRow}, {32*576}")
    a(f"s_lshl_b32 s{sT2}, s{sCol}, 6")
    PA, PD, IF, A0 = 56, 80, 104, 112
    for td in range(3):
        for u in range(2):
            a(f"buffer_load_dwordx4 {vr(PA + (td*2+u)*4, 4)}, v{vRo}, {srd(SO)}, s{sT2} offen offset:{32*u}")
        if td < 2: a(f"s_add_u32 s{sT2}, s{sT2}, {32*192}")
    for s in range(6):
        a(f"buffer_load_dwordx4 {vr(PD + s*4, 4)}, v{vRq}, {srd(SW)}, s{sT0} offen offset:{384 + 32*s}")
    xloads()
    a(f"v_and_b32 v{vT2}, 1, v{vS}")
    a(f"v_lshlrev_b32 v{vT2}, 4, v{vT2}")
    a(f"v_mov_b32 v{vVal}, 0x3f80")
    a(f"v_lshlrev_b32 v{vVal}, v{vT2}, v{vVal}")
    a(f"v_lshrrev_b32 v{vS}, 1, v{vS}")
    a(f"v_lshrrev_b32 v{vT2}, 2, v{vT1}")
    a(f"v_sub_u32 v{vS}, v{vS}, v{vT2}")
    for u in range(2):
        for q in range(4):
            a(f"v_cmp_eq_u32 vcc, {8*u+q}, v{vS}")
            a(f"v_cndmask_b32 v{IF + u*4 + q}, 0, v{vVal}, vcc")
    for td in range(3):
        acc = A0 + 16 * td
        a(f"{MF} {vr(acc,16)}, {vr(PA + (td*2)*4, 4)}, {vr(IF,4)}, 0")
        a(f"{MF} {vr(acc,16)}, {vr(PA + (td*2+1)*4, 4)}, {vr(IF+4,4)}, {vr(acc,16)}")
    for td in range(3):
        cvt_tile(PA + td * 8, A0 + 16 * td)
    for s in range(6):
        a(f"{MF} {vr(A0,16)}, {vr(PD + s*4, 4)}, {vr(PA + s*4, 4)}, {'0' if s == 0 else vr(A0,16)}")
    a(f"s_mul_i32 s{sT0}, s{sCol}, 6144")
    a(f"s_lshl_b32 s{sT1}, s{sRow}, 11")
    a(f"s_add_u32 s{sT0}, s{sT0}, s{sT1}")
    a(f"v_add_u32 v{vT2}, s{sT0}, v{vLds}")
    cvt_tile(A0 + 16, A0)
    a(f"ds_write_b128 v{vT2}, {vr(A0+16,4)} offset:18432")
    a(f"ds_write_b128 v{vT2}, {vr(A0+20,4)} offset:{18432+1024}")
    a("s_branch L_join")
    a.label("L_G")
    a.hist, a.vm, a.lg = list(snap[0]), list(snap[1]), list(snap[2])
    PK, PQ, AG = 56, 80, 152
    a(f"s_sub_u32 s{sCol}, s{sWave}, 9")
    a(f"s_mul_i32 s{sT1}, s{sCol}, {32*576}")
    a(f"s_mov_b32 s{sT0}, 0")
    for s in range(6):
        a(f"buffer_load_dwordx4 {vr(PK + s*4, 4)}, v{vRq}, {srd(SW)}, s{sT1} offen offset:{192 + 32*s}")
    for tc in range(3):
        for s in range(6):
            a(f"buffer_load_dwordx4 {vr(PQ + (tc*6+s)*4, 4)}, v{vRq}, {srd(SW)}, s{sT0} offen offset:{32*s}")
        if tc < 2: a(f"s_add_u32 s{sT0}, s{sT0}, {32*576}")
    xloads()
    accs = [AG, PQ, PQ + 24]
    for tc in range(3):
        for s in range(6):
            a(f"{MF} {vr(accs[tc],16)}, {vr(PQ + (tc*6+s)*4, 4)}, {vr(PK + s*4, 4)}, {'0' if s == 0 else vr(accs[tc],16)}")
    a(f"s_mul_i32 s{sT0}, s{sCol}, 6144")
    a(f"v_add_u32 v{vT2}, s{sT0}, v{vLds}")
    for tc in range(3):
        for i in range(16): a(f"v_mul_f32 v{accs[tc]+i}, s{sC}, v{accs[tc]+i}")
        cvt_tile(accs[tc], accs[tc])
        a(f"ds_write_b128 v{vT2}, {vr(accs[tc],4)} offset:{tc*2048}")
        a(f"ds_write_b128 v{vT2}, {vr(accs[tc]+4,4)} offset:{tc*2048+1024}")
    a.label("L_join")
    a("s_nop 7")
    a.force_wait("lgkmcnt(0)")
    stamp()
    a("s_barrier")
    stamp()
    a.vm = [(set(("v", XF(tt, s) + i) for i in range(4)), None) for tt in range(2) for s in range(6)]
    for tcp in range(3):
        for s in range(6):
            a(f"ds_read_b128 {vr(WF(s),4)}, v{vLds} offset:{(tcp*6+s)*1024}")
        for s in range(6):
            for qt in range(2):
                a(f"{MF} {vr(ACC[qt],16)}, {vr(WF(s),4)}, {vr(XF(qt,s),4)}, {'0' if s == 0 else vr(ACC[qt],16)}")
            if tcp == 0 and s == 0: stamp()
        for qt in range(2):
            cvt_tile(TF(qt, 2 * tcp), ACC[qt])
    stamp()
    for s in range(6):
        a(f"ds_read_b128 {vr(WF(s),4)}, v{vLds} offset:{18432 + s*1024}")
    for qt in range(2):
        for s in range(6):
            for kt in range(2):
                a(f"{MF} {vr(ACC[kt],16)}, {vr(XF(kt,s),4)}, {vr(TF(qt,s),4)}, {'0' if s == 0 else vr(ACC[kt],16)}")
        S = [ACC[0] + i for i in range(16)] + [ACC[1] + i for i in range(9)]
        m, t = TMP, TMP + 1
        a(f"v_max3_f32 v{m}, v{S[0]}, v{S[1]}, v{S[2]}")
        for i in range(3, 15, 2): a(f"v_max3_f32 v{m}, v{m}, v{S[i]}, v{S[i+1]}")
        a(f"v_cndmask_b32 v{S[24]}, v{S[24]}, v{vNeg}, s[{sHM}:{sHM+1}]")
        for i in range(15, 25, 2): a(f"v_max3_f32 v{m}, v{m}, v{S[i]}, v{S[i+1]}")
        a(f"v_mov_b32 v{t}, v{m}")
        a(f"v_permlane32_swap_b32 v{m}, v{t}")
        a(f"v_max_f32 v{m}, v{m}, v{t}")
        for r in S: a(f"v_sub_f32 v{r}, v{r}, v{m}")
        for r in S: a(f"v_exp_f32 v{r}, v{r}")
        a(f"v_add_f32 v{m}, v{S[0]}, v{S[1]}")
        a(f"v_add_f32 v{t}, v{S[2]}, v{S[3]}")
        for i in range(4, 24, 2):
            a(f"v_add_f32 v{m}, v{m}, v{S[i]}")
            a(f"v_add_f32 v{t}, v{t}, v{S[i+1]}")
        a(f"v_add_f32 v{m}, v{m}, v{S[24]}")
        a(f"v_add_f32 v{m}, v{m}, v{t}")
        a(f"v_mov_b32 v{t}, v{m}")
        a(f"v_permlane32_swap_b32 v{m}, v{t}")
        a(f"v_add_f32 v{m}, v{m}, v{t}")
        a(f"v_rcp_f32 v{m}, v{m}")
        for r in S: a(f"v_mul_f32 v{r}, v{r}, v{m}")
        for i in range(12): a(f"v_cvt_pk_bf16_f32 v{PF(qt,0)+i}, v{S[2*i]}, v{S[2*i+1]}")
        a(f"v_cvt_pk_bf16_f32 v{PF(qt,3)}, v{S[24]}, 0")
        for i in range(1, 4): a(f"v_mov_b32 v{PF(qt,3)+i}, 0")
    stamp()
    for te in range(3):
        for s in range(6):
            for kt in range(2):
                a(f"{MF} {vr(ACC[kt],16)}, {vr(XF(kt,s),4)}, {vr(WF(s),4)}, {'0' if s == 0 else vr(ACC[kt],16)}")
        if te < 2:
            for s in range(6):
                a(f"ds_read_b128 {vr(WF(s),4)}, v{vLds} offset:{18432 + ((te+1)*6+s)*1024}")
        cvt_tile(UF(0), ACC[0]); cvt_tile(UF(2), ACC[1])
        for ks in range(4):
            for qt in range(2):
                a(f"{MF} {vr(ACC[qt],16)}, {vr(UF(ks),4)}, {vr(PF(qt,ks),4)}, {'0' if ks == 0 else vr(ACC[qt],16)}")
        for qt in range(2):
            cvt_tile(ACC[qt], ACC[qt])
            for u in range(2):
                a(f"buffer_store_dwordx4 {vr(ACC[qt]+4*u,4)}, v{[vOff0,vOff1][qt]}, {srd(SOUT)}, s{sBase} offen offset:{32*(2*te+u)} {store_flags}")
    stamp()
    if stamps:
        a.force_wait("vmcnt(0)")
        stamp()
        a.force_wait("lgkmcnt(0)")
        a("s_mov_b32 s44, s40"); a("s_mov_b32 s45, s41"); a("s_mov_b32 s46, 0x1000000"); a("s_mov_b32 s47, 0x20000")
        a("v_mov_b32 v1, 0")
        for i in range(nstamp[0]):
            a(f"v_mov_b32 v2, s{48+2*i}")
            a(f"v_mov_b32 v3, s{49+2*i}")
            a(f"buffer_store_dwordx2 v[2:3], v1, s[44:47], s42 offen offset:{8*i}")
            a("s_nop 1")
        a("s_getreg_b32 s48, hwreg(HW_REG_XCC_ID)")
        a("s_getreg_b32 s49, hwreg(HW_REG_HW_ID)")
        a(f"v_mov_b32 v2, s48"); a(f"v_mov_b32 v3, s49")
        a(f"buffer_store_dwordx2 v[2:3], v1, s[44:47], s42 offen offset:120")
    a.label("L_end")
    a("s_endpgm")
    print("nops inserted:", a.nops, file=sys.stderr)
    return wrap(a.text(), 243, 768, 36864, 168, 80 if stamps else 48)

if __name__ == "__main__":
    for w in range(2916+100): assert (w*1214)>>16 == w//54
    for t in range(64): assert (t*37)>>8 == t//7
    for t in range(9): assert (t*11)>>5 == t//3
    open("v1.s", "w").write(gen())
    open("v1_st.s", "w").write(gen(stamps=True))
```

```python
import re
from asmgen import Ins, need

VPAT = re.compile(r"\{([A-Za-z_][\w]*)(?:\.(\d)(?::(\d))?)?\}")

class Op:
    def __init__(self, text, stream, after=(), name=None, fence=False, raw=None):
        self.text = text; self.stream = stream; self.after = list(after); self.name = name
        self.fence = fence; self.raw = raw
        self.quads = list(dict.fromkeys(m.group(1) for m in VPAT.finditer(text)))
        self.done = False; self.t_issue = None; self.idx = None

class Sched:
    def __init__(self, asm, free_quads, reserve=2, lds_lat=120, lookahead=10):
        self.a = asm; self.free = list(free_quads); self.reserve = reserve
        self.ops = []; self.map = {}; self.lds_lat = lds_lat; self.lookahead = lookahead
        self.maxlive = 0; self.nq = len(self.free)
    def add(self, text, stream, **kw):
        o = Op(text, stream, **kw); o.idx = len(self.ops); self.ops.append(o); return o
    def subst(self, text, mp):
        def f(m):
            b = mp[m.group(1)]
            if m.group(2) is None: return f"v[{b}:{b+3}]"
            k = int(m.group(2))
            if m.group(3) is None: return f"v{b+k}"
            return f"v[{b+k}:{b+k+int(m.group(3))-1}]"
        return VPAT.sub(f, text)
    def run(self, verbose=False):
        ops = self.ops
        names = list(dict.fromkeys(q for o in ops for q in o.quads))
        fake = {n: 1000 + 4 * i for i, n in enumerate(names)}
        lastw = {}; readers = {}
        for o in ops:
            o.deps = set(x.idx for x in o.after)
            if o.raw: o.ins = None; continue
            ins = Ins(self.subst(o.text, fake)); o.ins = ins
            for r in ins.rs:
                if r in lastw: o.deps.add(lastw[r])
            for r in ins.ws:
                if r in lastw: o.deps.add(lastw[r])
                for x in readers.get(r, ()): o.deps.add(x)
            for r in ins.rs: readers.setdefault(r, []).append(o.idx)
            for r in ins.ws: lastw[r] = o.idx; readers[r] = []
            o.deps.discard(o.idx)
        uses = {n: 0 for n in names}
        for o in ops:
            for q in o.quads: uses[q] += 1
        streams = {}
        for o in ops: streams.setdefault(o.stream, []).append(o)
        pos = {s: 0 for s in streams}
        mpos = {o.idx: i for i, o in enumerate(streams.get("M", []))}
        first_use = {}
        for o in ops:
            if o.stream == "M":
                for d in o.deps:
                    first_use.setdefault(d, mpos[o.idx])
        t = 0; mfree = 0; n = 0
        def ready_time(o):
            rt = 0
            for d in o.deps:
                p = ops[d]
                if not p.done: return None
                if p.ins is None: continue
                lat = 0
                if p.ins.is_ds and p.ins.w and (p.ins.ws & (o.ins.rs | o.ins.ws) if o.ins else True): lat = self.lds_lat
                elif p.ins.is_mfma and o.ins is not None and (p.ins.ws & (o.ins.rs | o.ins.ws)):
                    lat = 0 if (o.ins.is_mfma and list(o.ins.srcC) == list(p.ins.w)) else 4 * p.ins.passes + 20
                rt = max(rt, p.t_issue + lat)
            return rt
        def stall_states(o):
            if o.ins is None: return 0
            mp = dict(self.map); fr = list(self.free)
            for q in o.quads:
                if q not in mp: mp[q] = fr.pop(0)
            ins = Ins(self.subst(o.text, mp)); dist = 0; req = 0
            for p in reversed(self.a.hist):
                k = need(p, ins)
                if k - dist > req: req = k - dist
                dist += p.states()
                if dist > 20: break
            return req
        total = len(ops)
        while n < total:
            cands = []
            for s, lst in streams.items():
                if pos[s] >= len(lst): continue
                o = lst[pos[s]]
                rt = ready_time(o)
                if rt is None: continue
                newq = [q for q in o.quads if q not in self.map]
                lim = self.reserve if s == "R" else 0
                if newq and len(self.free) - len(newq) < lim: continue
                if s == "R" and o.idx in first_use and first_use[o.idx] - pos.get("M", 0) > self.lookahead: continue
                if s == "M": rt = max(rt, mfree)
                rt = max(rt, t + 4 * stall_states(o))
                pr = {"R": 0, "M": 1, "W": 2, "C": 3, "V": 4}.get(s, 4)
                cands.append((max(rt, t), pr, o))
            if not cands:
                raise RuntimeError("scheduler deadlock; pos=%s free=%d next=%s" % (pos, len(self.free), {s: (streams[s][pos[s]].text if pos[s] < len(streams[s]) else None) for s in streams}))
            cands.sort(key=lambda c: (c[0], c[1]))
            rt, _, o = cands[0]
            for q in o.quads:
                if q not in self.map: self.map[q] = self.free.pop(0)
            self.maxlive = max(self.maxlive, self.nq - len(self.free))
            t = rt; o.t_issue = t; o.done = True; pos[o.stream] += 1; n += 1
            if o.raw:
                o.raw(); t += 150
            else:
                self.a(self.subst(o.text, self.map))
                if o.ins.is_mfma: mfree = t + 4 * o.ins.passes; t += 8
                elif o.ins.is_trans: t += 8
                else: t += 4
            for q in o.quads:
                uses[q] -= 1
                if uses[q] == 0: self.free.append(self.map.pop(q))
        self.t = t
        return t
```

```python
import sys, struct
from asmgen import Asm, vr
from sched import Sched
from gen_v1 import wrap, XB, CS

MF = "v_mfma_f32_16x16x32_bf16"
CNT, XLB, TFL, ULB, GF = 0, 64, 3136, 6208, 9280
NF = GF + 18432
XA = GF + 36864
R1 = XA + 36864
R2 = R1 + 36864
LDS_SIZE = R2 + 36864
ROWADJ = 72576 - 1344
TOK48 = 6 * 72576 + 6 * 192
C1, C2, C3, CX, C4, C7, C57, C8 = range(8)

def gen(store_flags="sc1 nt", load_flags="nt", stamps=False, rot=True, lookahead=10, xpre=0, poll2_after=1, wflags=""):
    a = Asm()
    SX, SW, SOUT = 8, 12, 16
    sWave, sBase, sXL = 20, 21, 22
    sT0, sT1, sT2, sT3, sT4 = 23, 24, 25, 26, 27
    sLo, sHi = 28, 29
    sM = 30; sC = 32; sFj = 33; sG0 = 34; sIt = 40
    Gk, Lk, Gs, Ls = 48, 51, 54, 57
    vLds, vXA = 1, 2
    vA = [3, 4, 5]; vB = [6, 7, 8]
    vUL, vXLb, vT = 9, 10, 11
    srd = lambda b: f"s[{b}:{b+3}]"
    nstamp = [0]
    SB = 62
    def stamp(i=None):
        if not stamps: return
        if i is None: i = nstamp[0]
        nstamp[0] = max(nstamp[0], i + 1)
        a(f"{'s_memrealtime' if stamps == 'rt' else 's_memtime'} s[{SB+2*i}:{SB+1+2*i}]")
    nl = [0]
    def signal(*cs):
        a("s_mov_b64 exec, 1")
        a(f"v_mov_b32 v{vT}, 1")
        for c in cs: a(f"ds_add_u32 v{vLds}, v{vT} offset:{CNT + 4*c}")
        a("s_mov_b64 exec, -1")
    def poll(c, n):
        nl[0] += 1; L = f"L_poll{nl[0]}"
        a(f"s_movk_i32 s{sIt}, 0x7fff")
        a.label(L)
        a(f"ds_read_b32 v{vT}, v{vLds} offset:{CNT + 4*c}")
        a.force_wait("lgkmcnt(0)")
        a(f"v_readfirstlane_b32 s{sT0}, v{vT}")
        a(f"s_cmp_ge_u32 s{sT0}, {n}")
        a(f"s_cbranch_scc1 {L}_d")
        h = list(a.hist)
        a(f"s_sub_u32 s{sIt}, s{sIt}, 1")
        a(f"s_cbranch_scc0 {L}")
        a.label(L + "_d")
        a.hist = h

    a("s_cmp_ge_u32 s2, 243")
    a("s_cbranch_scc1 L_end")
    if stamps: a("s_memrealtime s[92:93]")
    stamp(0)
    a("s_load_dwordx4 s[4:7], s[0:1], 0")
    a("s_load_dwordx4 s[36:39], s[0:1], 16")
    if stamps: a("s_load_dwordx2 s[44:45], s[0:1], 40")
    t1, t2, t3, vW = 12, 13, 14, 15
    a(f"v_lshrrev_b32 v{t1}, 6, v0")
    a(f"v_and_b32 v0, 63, v0")
    a(f"v_readfirstlane_b32 s{sWave}, v{t1}")
    a(f"v_lshlrev_b32 v{vLds}, 4, v0")
    a(f"s_mul_i32 s{sT0}, s2, 12")
    a(f"s_add_u32 s{sT0}, s{sT0}, s{sWave}")
    if stamps: a(f"s_lshl_b32 s42, s{sT0}, 7")
    a(f"s_mul_i32 s{sT1}, s{sT0}, 1214")
    a(f"s_lshr_b32 s{sT1}, s{sT1}, 16")
    a(f"s_mul_i32 s{sT2}, s{sT1}, 54")
    a(f"s_sub_u32 s{sT2}, s{sT0}, s{sT2}")
    a(f"s_mul_i32 s{sBase}, s{sT1}, 508032")
    a(f"s_mul_i32 s{sT2}, s{sT2}, 1344")
    a(f"s_add_u32 s{sBase}, s{sBase}, s{sT2}")
    a(f"s_mul_i32 s{sXL}, s{sWave}, 9216")
    a(f"s_add_u32 s{sXL}, s{sXL}, {XA}")
    a(f"s_lshr_b32 s{sT0}, s{sWave}, 2")
    a(f"s_sub_u32 s{sT0}, 0, s{sT0}")
    a(f"s_xor_b32 s{sT0}, s{sT0}, s{sWave}")
    a(f"s_and_b32 s{sLo}, s{sWave}, 1")
    a(f"s_xor_b32 s{sT0}, s{sT0}, s{sLo}")
    a(f"s_and_b32 s{sFj}, s{sT0}, 3")
    a(f"s_bfe_u32 s{sHi}, s{sWave}, 0x10001")
    a(f"v_xor_b32 v{vT}, s{sFj}, v0")
    a(f"v_lshlrev_b32 v{vT}, 4, v{vT}")
    a(f"v_lshrrev_b32 v{t1}, 4, v0")
    a(f"v_sub_u32 v{t2}, 0, v{t1}")
    a(f"v_xor_b32 v{t2}, v{t2}, v0")
    a(f"v_and_b32 v{t2}, 3, v{t2}")
    a(f"v_lshlrev_b32 v{t2}, 4, v{t2}")
    a(f"v_bfe_u32 v{t3}, v0, 2, 2")
    a(f"v_lshl_add_u32 v{t1}, v{t1}, 3, v{t3}")
    a(f"v_mul_u32_u24 v{t1}, 576, v{t1}")
    a(f"v_add_u32 v{vW}, v{t1}, v{t2}")
    a(f"s_cmp_ge_u32 s{sWave}, 8")
    a(f"s_cselect_b32 s{sT0}, 2, s{sHi}")
    a(f"s_mul_i32 s{sT1}, s{sT0}, 192")
    a(f"s_mul_i32 s{sT2}, s{sLo}, {4*576}")
    a(f"s_add_u32 s{sT1}, s{sT1}, s{sT2}")
    a(f"s_mul_i32 s{sT2}, s{sT0}, 18432")
    a(f"s_mul_i32 s{sT3}, s{sLo}, 3072")
    a(f"s_add_u32 s{sT2}, s{sT2}, s{sT3}")
    a(f"s_add_u32 s{sT2}, s{sT2}, {R1}")
    a(f"s_mul_i32 s{sT3}, s{sLo}, 9216")
    a(f"s_add_u32 s{sT4}, s{sT3}, {R2 + 18432}")
    a(f"s_cmp_ge_u32 s{sWave}, 10")
    a(f"s_cselect_b32 s{sT1}, s{sT3}, s{sT1}")
    a(f"s_cselect_b32 s{sT2}, s{sT4}, s{sT2}")
    a(f"s_movk_i32 s{sT3}, 18432"); a(f"s_cmov_b32 s{sT3}, 3072")
    a(f"s_movk_i32 s{sT4}, 6144"); a(f"s_cmov_b32 s{sT4}, 3072")
    a(f"s_cselect_b32 s{sM}, 10, 6")
    a(f"s_cselect_b64 vcc, -1, 0")
    a(f"v_cndmask_b32 v{vW}, v{vW}, v{vLds}, vcc")
    if rot:
        a(f"s_lshr_b32 s{sT0}, s2, 3")
        a(f"s_mul_i32 s{sM+1}, s{sT0}, 43"); a(f"s_lshr_b32 s{sM+1}, s{sM+1}, 7")
        a(f"s_mul_i32 s{sC}, s{sM+1}, 3"); a(f"s_sub_u32 s{sT0}, s{sT0}, s{sC}")
        a(f"s_mul_i32 s{sC}, s{sM+1}, 43"); a(f"s_lshr_b32 s{sC}, s{sC}, 7")
        a(f"s_mul_i32 s{sC}, s{sC}, 3"); a(f"s_sub_u32 s{sM+1}, s{sM+1}, s{sC}")
    else:
        a(f"s_mov_b32 s{sT0}, 0"); a(f"s_mov_b32 s{sM+1}, 0")
    for kk in range(3):
        a(f"s_mul_i32 s{Gk+kk}, s{sT0}, s{sT3}"); a(f"s_add_u32 s{Gk+kk}, s{Gk+kk}, s{sT1}")
        a(f"s_mul_i32 s{Lk+kk}, s{sT0}, s{sT4}"); a(f"s_add_u32 s{Lk+kk}, s{Lk+kk}, s{sT2}")
        a(f"s_lshl_b32 s{Gs+kk}, s{sM+1}, s{sM}")
        a(f"s_lshl_b32 s{Ls+kk}, s{sM+1}, 10")
        if kk < 2:
            for r in (sT0, sM + 1):
                a(f"s_add_u32 s{r}, s{r}, 1"); a(f"s_cmp_eq_u32 s{r}, 3"); a(f"s_cmov_b32 s{r}, 0")
    a(f"s_mul_i32 s{sT1}, s{sWave}, 192")
    a(f"s_add_u32 s{sT1}, s{sT1}, {XLB}")
    a(f"s_add_u32 s{sT0}, s{sBase}, {TOK48}")
    a(f"s_mov_b32 m0, s{sT1}")
    a(f"s_cmp_ge_u32 s{sWave}, 10")
    a.waitcnt(lg=0)
    a(f"s_mov_b32 s{SX}, s4"); a(f"s_mov_b32 s{SX+1}, s5"); a(f"s_mov_b32 s{SX+2}, {XB}"); a(f"s_mov_b32 s{SX+3}, 0x20000")
    a("s_mov_b64 exec, 0xfff")
    a(f"buffer_load_dwordx4 v{vT}, {srd(SX)}, s{sT0} offen {load_flags} lds")
    a("s_mov_b64 exec, -1")
    a(f"s_cselect_b32 s{SW}, s36, s6")
    a(f"s_cselect_b32 s{SW+1}, s37, s7")
    a(f"s_mov_b32 s{SW+2}, {96*576}"); a(f"s_cmov_b32 s{SW+2}, {96*192}")
    a(f"s_mov_b32 s{SW+3}, 0x20000")
    a(f"s_mov_b32 s{SOUT}, s38"); a(f"s_mov_b32 s{SOUT+1}, s39"); a(f"s_mov_b32 s{SOUT+2}, {XB}"); a(f"s_mov_b32 s{SOUT+3}, 0x20000")
    def wdma():
        for kk in range(3):
            for ss in range(3):
                a(f"s_add_u32 m0, s{Lk+kk}, s{Ls+ss}")
                a(f"s_add_u32 s{sT0}, s{Gk+kk}, s{Gs+ss}")
                a(f"buffer_load_dwordx4 v{vW}, {srd(SW)}, s{sT0} offen {wflags} lds")
    def calc_AB():
        for k in range(3):
            a(f"v_mul_u32_u24 v{t1}, 171, v0")
            if k: a(f"v_add_u32 v{t1}, {64*k*171}, v{t1}")
            a(f"v_lshrrev_b32 v{t2}, 13, v{t1}")
            a(f"v_sub_u32 v{t2}, 0, v{t2}")
            a(f"v_lshrrev_b32 v{t1}, 11, v{t1}")
            a(f"v_and_b32 v{t1}, 2, v{t1}")
            a(f"v_xor_b32 v{t1}, v{t1}, v{t2}")
            a(f"v_and_b32 v{t1}, 3, v{t1}")
            a(f"v_xor_b32 v{t1}, v{t1}, v0")
            a(f"v_lshlrev_b32 v{vA[k]}, 4, v{t1}")
            a(f"v_add_u32 v{vB[k]}, {ROWADJ}, v{vA[k]}")
    def xaddr(i, emit):
        r0 = (64 * i) // 84; thr = 84 * (r0 + 1) - 64 * i; k = i % 3
        emit(f"s_add_u32 s{sT1}, s{sBase}, {r0 * ROWADJ + 4096 * (i // 4)}")
        if thr < 64:
            emit(f"s_lshl_b64 s[{sM}:{sM+1}], -1, {thr}")
            emit(f"v_cndmask_b32 v{vT}, v{vA[k]}, v{vB[k]}, s[{sM}:{sM+1}]")
            return vT
        return vA[k]
    def xdma(lo=0, hi=9):
        for i in range(lo, hi):
            if i % 4 == 0 or i == lo: a(f"s_add_u32 m0, s{sXL}, {4096 * (i // 4)}")
            tv = xaddr(i, a)
            a(f"buffer_load_dwordx4 v{tv}, {srd(SX)}, s{sT1} offen offset:{1024*(i%4)} {load_flags} lds")
    def calc_misc():
        a(f"v_and_b32 v{t1}, 15, v0")
        a(f"v_lshrrev_b32 v{t2}, 2, v{t1}")
        a(f"v_sub_u32 v{t2}, 0, v{t2}")
        a(f"v_lshrrev_b32 v{vUL}, 4, v0")
        a(f"v_xor_b32 v{t2}, v{t2}, v{vUL}")
        a(f"v_and_b32 v{t2}, 3, v{t2}")
        a(f"v_lshlrev_b32 v{t3}, 4, v{t2}")
        a(f"v_lshl_add_u32 v{t3}, v{t1}, 6, v{t3}")
        a(f"v_and_b32 v{vXA}, 2, v{t1}")
        a(f"v_xor_b32 v{t2}, v{t2}, v{vXA}")
        a(f"v_lshlrev_b32 v{t2}, 4, v{t2}")
        a(f"v_mul_u32_u24 v{vXA}, 192, v{t1}")
        a(f"v_add3_u32 v{vXA}, v{vXA}, v{t2}, s{sXL}")
        a(f"s_mul_i32 s{sT1}, s{sWave}, 192")
        a(f"s_add_u32 s{sT1}, s{sT1}, {XLB}")
        a(f"v_xor_b32 v{vXLb}, s{sFj}, v{vUL}")
        a(f"v_lshl_add_u32 v{vXLb}, v{vXLb}, 4, s{sT1}")
        a(f"s_lshr_b32 s{sT1}, s{sWave}, 2")
        a(f"s_lshl_b32 s{sT1}, s{sT1}, 7")
        a(f"s_and_b32 s{sT2}, s{sWave}, 3")
        a(f"s_lshl_b32 s{sT2}, s{sT2}, 1")
        a(f"s_add_u32 s{sT1}, s{sT1}, s{sT2}")
        a(f"s_add_u32 s{sT1}, s{sT1}, {ULB}")
        a(f"v_lshl_add_u32 v{vUL}, v{t1}, 3, s{sT1}")
        a(f"s_mov_b32 s{sC}, {CS:#x}")
        a(f"s_mov_b64 s[{sG0}:{sG0+1}], 0xffff")
    PA, PB, PD = 16, 52, 88
    def wjob(isN):
        rb = R2 if isN else R1
        a(f"s_mul_i32 s{sT1}, s{sLo}, 3072")
        a(f"s_add_u32 s{sT1}, s{sT1}, {rb}")
        a(f"v_add_u32 v{t1}, s{sT1}, v{t3}")
        if not isN:
            a(f"s_mul_i32 s{sT2}, s{sHi}, 3072")
            a(f"s_add_u32 s{sT2}, s{sT2}, {rb + 18432}")
            a(f"v_add_u32 v{t2}, s{sT2}, v{t3}")
        else:
            a(f"v_lshrrev_b32 v{t2}, 4, v0")
            a(f"v_bfe_u32 v{vW}, v0, 2, 2")
            a(f"v_lshl_add_u32 v{t2}, v{t2}, 3, v{vW}")
            a(f"v_mul_u32_u24 v{t2}, 192, v{t2}")
            a(f"v_and_b32 v{vW}, 3, v0")
            a(f"v_lshl_add_u32 v{t2}, v{vW}, 4, v{t2}")
            a(f"s_lshl_b32 s{sT2}, s{sHi}, 3")
            a(f"s_add_u32 s{sT2}, s{sT2}, {rb + 18432}")
            a(f"v_add_u32 v{t2}, s{sT2}, v{t2}")
        a(f"s_mul_i32 s{sT1}, s{sHi}, 3072")
        a(f"s_lshl_b32 s{sT2}, s{sLo}, 3")
        a(f"s_add_u32 s{sT1}, s{sT1}, s{sT2}")
        a(f"v_add_u32 v{vW}, s{sT1}, v{vLds}")
        poll(C4 if isN else C1, 4)
        stamp(2)
        def rdA(kt, sd): a(f"ds_read_b128 {vr(PA+(kt*3+sd)*4,4)}, v{t1} offset:{kt*6144 + sd*1024}")
        def rdB(kt, sd):
            d = PB + (kt * 3 + sd) * 4
            if not isN: a(f"ds_read_b128 {vr(d,4)}, v{t2} offset:{kt*6144 + sd*1024}")
            else:
                for z in range(2): a(f"ds_read_b64_tr_b16 {vr(d+2*z,2)}, v{t2} offset:{192*(32*sd + 4*z) + 64*kt}")
        for sd in range(3): rdB(0, sd); rdA(0, sd)
        for kt in (1, 2):
            for sd in range(3): rdA(kt, sd)
        for kt in (1, 2):
            for sd in range(3): rdB(kt, sd)
        ob = NF if isN else GF
        def fin(ktp):
            for kt in range(3):
                d = PD + (ktp * 3 + kt) * 4
                if not isN:
                    for r in range(4): a(f"v_mul_f32 v{d+r}, s{sC}, v{d+r}")
                a(f"v_cvt_pk_bf16_f32 v{d}, v{d}, v{d+1}")
                a(f"v_cvt_pk_bf16_f32 v{d+1}, v{d+2}, v{d+3}")
                a(f"ds_write_b64 v{vW}, {vr(d,2)} offset:{ob + 6144*ktp + 1024*kt}")
        for ktp in range(3):
            for kt in range(3):
                d = PD + (ktp * 3 + kt) * 4
                for sd in range(3):
                    a(f"{MF} {vr(d,4)}, {vr(PA+(kt*3+sd)*4,4)}, {vr(PB+(ktp*3+sd)*4,4)}, {'0' if sd == 0 else vr(d,4)}")
            if ktp == 1 and not isN:
                a.waitcnt(lg=0); signal(C2)
            if ktp >= 1: fin(ktp - 1)
        fin(2)
        a.force_wait("lgkmcnt(0)")
    def ljob(isU):
        a(f"s_and_b32 s{sT2}, s{sWave}, 3")
        a(f"s_mul_i32 s{sT1}, s{sT2}, 6144")
        a(f"v_add_u32 v{t1}, s{sT1}, v{vLds}")
        a(f"v_subrev_u32 v{t2}, s{sXL}, v{vXA}")
        for s in range(3): a(f"ds_read_b128 {vr(PA+4*s,4)}, v{t2} offset:{XLB + 64*s}")
        for u in range(2):
            for s in range(3): a(f"ds_read_b128 {vr(PB+(u*3+s)*4,4)}, v{t1} offset:{(NF if isU else GF) + (u*3+s)*1024}")
        for u in range(2):
            d = PD + 4 * u
            for s in range(3):
                x, w = vr(PA+4*s,4), vr(PB+(u*3+s)*4,4)
                a(f"{MF} {vr(d,4)}, {x if isU else w}, {w if isU else x}, {'0' if s == 0 else vr(d,4)}")
        a(f"s_lshl_b32 s{sT1}, s{sT2}, 10")
        if isU:
            a(f"v_lshl_add_u32 v{t1}, v0, 3, s{sT1}")
        else:
            a(f"v_add_u32 v{t1}, s{sT1}, v{vLds}")
        for i in range(4): a(f"v_cvt_pk_bf16_f32 v{PD+i}, v{PD+2*i}, v{PD+2*i+1}")
        if isU:
            a(f"ds_write_b64 v{t1}, {vr(PD,2)} offset:{ULB}")
            a(f"ds_write_b64 v{t1}, {vr(PD+2,2)} offset:{ULB+512}")
        else:
            a(f"ds_write_b128 v{t1}, {vr(PD,4)} offset:{TFL}")
        a.force_wait("lgkmcnt(0)")
    def reset():
        a.vm = []; a.lg = []
    a("s_setprio 3")
    a(f"s_cmp_ge_u32 s{sWave}, 8")
    a("s_cbranch_scc1 L_C")
    a(f"s_cmp_ge_u32 s{sWave}, 4")
    a("s_cbranch_scc1 L_B")
    if xpre:
        calc_AB(); xdma(0, xpre); wdma(); xdma(xpre, 9)
    else:
        wdma(); calc_AB(); xdma()
    a(f"s_cmp_lg_u32 s{sWave}, 0")
    a("s_cbranch_scc1 L_A1")
    a(f"v_mov_b32 v{vT}, 0")
    a(f"v_lshlrev_b32 v{t1}, 2, v0")
    a("s_mov_b64 exec, 0xffff")
    a(f"ds_write_b32 v{t1}, v{vT} offset:{CNT}")
    a("s_mov_b64 exec, -1")
    a.force_wait("lgkmcnt(0)")
    a.label("L_A1")
    a("s_barrier")
    calc_misc()
    a.force_wait(f"vmcnt({9 - xpre})")
    stamp(1)
    signal(C1, CX)
    wjob(False)
    signal(C3)
    stamp(3)
    a("s_branch L_main")
    a.label("L_B"); reset()
    calc_AB(); calc_misc()
    a("s_barrier")
    a.force_wait("vmcnt(0)")
    stamp(1)
    signal(CX)
    poll(C2, 4)
    stamp(2)
    xdma()
    a(f"s_cmp_eq_u32 s{sWave}, 7")
    a("s_cbranch_scc1 L_B1")
    poll(CX, 12)
    poll(C3, 4)
    ljob(False)
    signal(C57)
    a.label("L_B1")
    stamp(3)
    a("s_branch L_main")
    a.label("L_C"); reset()
    calc_AB(); calc_misc()
    a("s_barrier")
    wdma()
    a.force_wait("vmcnt(9)")
    signal(CX)
    a.force_wait("vmcnt(0)")
    stamp(1)
    signal(C4)
    wjob(True)
    signal(C7, C57)
    poll(C7, 4)
    a(f"s_cmp_eq_u32 s{sWave}, 11")
    a("s_cbranch_scc1 L_C1")
    poll(CX, 12)
    ljob(True)
    signal(C8)
    a.label("L_C1")
    xdma()
    stamp(3)
    a.label("L_main"); reset()
    a("s_setprio 0")
    poll(C3, 4)
    stamp(4)
    a.force_wait("vmcnt(0)")
    stamp(5)
    sc = Sched(a, [12 + 4 * i for i in range(39)], reserve=4, lookahead=lookahead)
    R = lambda t, **k: sc.add(t, "R", **k)
    M = lambda t, **k: sc.add(t, "M", **k)
    V = lambda t, **k: sc.add(t, "V", **k)
    C = lambda t, **k: sc.add(t, "C", **k)
    W = lambda t, **k: sc.add(t, "W", **k)
    def chain(d, pairs):
        o = None
        for n, (x, y) in enumerate(pairs):
            o = M(f"{MF} {{{d}}}, {{{x}}}, {{{y}}}, " + ("0" if n == 0 else f"{{{d}}}"))
        return o
    def pack(dst, k, src, S=None):
        S = S or C
        S(f"v_cvt_pk_bf16_f32 {{{dst}.{k}}}, {{{src}.0}}, {{{src}.1}}")
        S(f"v_cvt_pk_bf16_f32 {{{dst}.{k+1}}}, {{{src}.2}}, {{{src}.3}}")
    for s in range(3):
        R(f"ds_read_b128 {{G0_{s}}}, v{vLds} offset:{GF + s*1024}")
        for tt in range(3): R(f"ds_read_b128 {{X{tt}_{s}}}, v{vXA} offset:{3072*tt + 64*s}")
    for tp in range(1, 6):
        for s in range(3): R(f"ds_read_b128 {{G{tp}_{s}}}, v{vLds} offset:{GF + (tp*3+s)*1024}")
    for tp in range(6):
        for s in range(3):
            for q in range(3):
                d = f"T{tp}_{q}"
                M(f"{MF} {{{d}}}, {{G{tp}_{s}}}, {{X{q}_{s}}}, " + ("0" if s == 0 else f"{{{d}}}"))
        for q in range(3): pack(f"T{tp & ~1}_{q}", 2 * (tp & 1), f"T{tp}_{q}")
    for s in range(3): R(f"ds_read_b128 {{X3_{s}}}, v{vXLb} offset:{64*s}")
    lastS = {}
    def Sphase(q):
        for s in range(3):
            for kt in range(4):
                d = f"S{q}_{kt}"
                lastS[q] = M(f"{MF} {{{d}}}, {{X{kt}_{s}}}, {{T{2*s}_{q}}}, " + ("0" if s == 0 else f"{{{d}}}"))
    for q in range(3): Sphase(q)
    if stamps: sc.add("", "R", raw=lambda: stamp(6), after=[lastS[0]])
    p2 = sc.add("", "R", raw=lambda: poll(C57, 7), after=[lastS[poll2_after]])
    for s in range(3): R(f"ds_read_b128 {{T{2*s}_3}}, v{vLds} offset:{TFL + s*1024}", after=[p2])
    Sphase(3)
    def softmax(qa, qb):
        vals = {q: [f"{{S{q}_{kt}.{r}}}" for kt in range(3) for r in range(4)] + [f"{{S{q}_3.0}}"] for q in (qa, qb)}
        m = {q: f"{{S{q}_3.1}}" for q in (qa, qb)}
        t = {q: f"{{S{q}_3.2}}" for q in (qa, qb)}
        for q in (qa, qb):
            v = vals[q]
            V(f"v_max3_f32 {m[q]}, {v[0]}, {v[1]}, {v[2]}")
            V(f"v_max3_f32 {t[q]}, {v[3]}, {v[4]}, {v[5]}")
            V(f"v_max3_f32 {m[q]}, {m[q]}, {v[6]}, {v[7]}")
            V(f"v_max3_f32 {t[q]}, {t[q]}, {v[8]}, {v[9]}")
            V(f"v_max3_f32 {m[q]}, {m[q]}, {v[10]}, {v[11]}")
            V(f"v_max3_f32 {m[q]}, {m[q]}, {t[q]}, {v[12]}")
        def xreduce(op, post=None):
            A, B = m[qa], m[qb]
            V(f"v_permlane32_swap_b32 {A}, {B}")
            V(f"{op} {A}, {A}, {B}")
            V(f"v_mov_b32 {B}, {A}")
            V(f"v_permlane16_swap_b32 {A}, {B}")
            V(f"{op} {A}, {A}, {B}")
            if post: V(f"{post} {A}, {A}")
            V(f"v_mov_b32 {B}, {A}")
            V(f"v_permlane32_swap_b32 {A}, {B}")
        xreduce("v_max_f32")
        for q in (qa, qb):
            v = vals[q]
            for x in v: V(f"v_sub_f32 {x}, {x}, {m[q]}")
        for q in (qa, qb):
            v = vals[q]
            V(f"v_exp_f32 {v[12]}, {v[12]}")
            for x in v[:12]: V(f"v_exp_f32 {x}, {x}")
            V(f"v_cndmask_b32 {v[12]}, 0, {v[12]}, s[{sG0}:{sG0+1}]")
            V(f"v_add_f32 {m[q]}, {v[0]}, {v[1]}")
            V(f"v_add_f32 {t[q]}, {v[2]}, {v[3]}")
            for i in range(4, 12, 2):
                V(f"v_add_f32 {m[q]}, {m[q]}, {v[i]}")
                V(f"v_add_f32 {t[q]}, {t[q]}, {v[i+1]}")
            V(f"v_add_f32 {m[q]}, {m[q]}, {v[12]}")
            V(f"v_add_f32 {m[q]}, {m[q]}, {t[q]}")
        xreduce("v_add_f32", "v_rcp_f32")
        for q in (qa, qb):
            v = vals[q]
            for x in v: V(f"v_mul_f32 {x}, {x}, {m[q]}")
            pack(f"S{q}_0", 0, f"S{q}_0", V); pack(f"S{q}_0", 2, f"S{q}_1", V)
            pack(f"S{q}_2", 0, f"S{q}_2", V)
            V(f"v_cvt_pk_bf16_f32 {{S{q}_2.2}}, {v[12]}, 0")
            V(f"v_mov_b32 {{S{q}_2.3}}, 0")
    softmax(0, 1); softmax(2, 3)
    for te in range(6):
        for s in range(3): R(f"ds_read_b128 {{N{te}_{s}}}, v{vLds} offset:{NF + (te*3+s)*1024}", after=[p2])
    for te in range(6):
        for s in range(3):
            for kt in range(3):
                d = f"U{te}_{kt}"
                lu = M(f"{MF} {{{d}}}, {{X{kt}_{s}}}, {{N{te}_{s}}}, " + ("0" if s == 0 else f"{{{d}}}"))
        if te == 3: lU3 = lu
        pack(f"U{te}_0", 0, f"U{te}_0"); pack(f"U{te}_0", 2, f"U{te}_1"); pack(f"U{te}_2", 0, f"U{te}_2")
        C(f"v_mov_b32 {{U{te}_2.3}}, 0")
    p3 = sc.add("", "R", raw=lambda: poll(C8, 3), after=[lU3])
    for te in range(6): R(f"ds_read_u16 {{U{te}_2.2}}, v{vUL} offset:{512*te}", after=[p3])
    if stamps: sc.add("", "R", raw=lambda: stamp(7), after=[lu])
    W(f"v_add_u32 v{vXLb}, s{sXL}, v{vLds}", after=[lastS[3]])
    for q in range(4):
        for te in range(6):
            lo = chain(f"O{te}_{q}", [(f"U{te}_0", f"S{q}_0"), (f"U{te}_2", f"S{q}_2")])
            pack(f"O{te & ~1}_{q}", 2 * (te & 1), f"O{te}_{q}")
        if q < 3:
            for s in range(3): W(f"ds_write_b128 v{vXA}, {{O{2*s}_{q}}} offset:{3072*q + 64*s}")
            for n in range(3): W(f"ds_read_b128 {{Z{q}_{n}}}, v{vXLb} offset:{1024*(3*q+n)}")
            for n in range(3):
                i = 3 * q + n
                tv = xaddr(i, W)
                W(f"buffer_store_dwordx4 {{Z{q}_{n}}}, v{tv}, {srd(SOUT)}, s{sT1} offen offset:{1024*(i%4)} {store_flags}")
        else:
            W(f"v_and_b32 v{vA[0]}, 15, v0")
            W(f"v_and_b32 v{vA[1]}, 48, v0")
            W(f"v_cmp_ne_u32 vcc, s{sWave}, v{vA[0]}")
            W(f"v_mov_b32 v{vA[2]}, 0x40000000")
            W(f"s_add_u32 s{sT1}, s{sBase}, {TOK48}")
            W(f"v_cndmask_b32 v{vA[1]}, v{vA[1]}, v{vA[2]}, vcc")
            for s in range(3):
                W(f"buffer_store_dwordx4 {{O{2*s}_3}}, v{vA[1]}, {srd(SOUT)}, s{sT1} offen offset:{64*s} {store_flags}")
    tt = sc.run()
    stamp(8)
    if stamps:
        a.force_wait("vmcnt(0)")
        stamp(9)
        a("s_memrealtime s[90:91]")
        a.force_wait("lgkmcnt(0)")
        a("s_mov_b32 s46, 0x1000000"); a("s_mov_b32 s47, 0x20000")
        a("v_mov_b32 v1, 0")
        for i in range(nstamp[0]):
            a(f"v_mov_b32 v2, s{SB+2*i}")
            a(f"v_mov_b32 v3, s{SB+1+2*i}")
            a(f"buffer_store_dwordx2 v[2:3], v1, s[44:47], s42 offen offset:{8*i}")
            a("s_nop 1")
        for r, o in ((90, 104), (92, 112)):
            a(f"v_mov_b32 v2, s{r}"); a(f"v_mov_b32 v3, s{r+1}")
            a(f"buffer_store_dwordx2 v[2:3], v1, s[44:47], s42 offen offset:{o}")
            a("s_nop 1")
    a.label("L_end")
    a("s_endpgm")
    print(f"nops {a.nops} stamps {nstamp[0]} est lone-wave cycles {tt} maxlive quads {sc.maxlive}", file=sys.stderr)
    return wrap(a.text(), 243, 768, LDS_SIZE, 168, 96 if stamps else 64)

if __name__ == "__main__":
    for c in range(192): assert (c*171)>>11 == c//12
    for c in range(32): assert (c*43)>>7 == c//3
    open("v3.s", "w").write(gen())
    open("v3_st.s", "w").write(gen(stamps=True))
    open("v3_rt.s", "w").write(gen(stamps='rt'))
```
